```python
import torch

def _softmax(x, axis=-1):
    return torch.softmax(x, dim=axis)
def _gelu(x):
    return torch.nn.functional.gelu(x, approximate="tanh")
def _silu(x):
    return torch.nn.functional.silu(x)
def _sigmoid(x):
    return torch.sigmoid(x)
def _layernorm(x, axis=-1, eps=1e-5):
    m = x.mean(dim=axis, keepdim=True)
    v = x.var(dim=axis, keepdim=True, unbiased=False)
    return (x - m) / torch.sqrt(v + eps)
def _scatter_add(tgt, idx, src, axis=0):
    return tgt.clone().index_add_(axis, idx, src)
def _segment_sum(src, seg, n):
    out = torch.zeros((n,) + src.shape[1:], dtype=src.dtype)
    return out.index_add_(0, seg, src)
def _pad(x, pw):
    flat = tuple(v for pair in reversed(pw) for v in pair)
    return torch.nn.functional.pad(x, flat)

kernel_name = 'concat_heads__softmax_full_mha__mha_block__prompt'

def setup_inputs():

    _w = (lambda a: (lambda t: t.to(torch.bfloat16) if t.is_floating_point() else t)(torch.as_tensor(a)))
    def _A_setup():
        B, S, D = 1, 2048, 512
        return {
            "x": _w((lambda *s: torch.randn(*s, dtype=torch.bfloat16) * 0.2)(B, S, D)),
            "wqkv": _w((lambda *s: torch.randn(*s, dtype=torch.bfloat16) * 0.2)(D, 3 * D)),
            "wo": _w((lambda *s: torch.randn(*s, dtype=torch.bfloat16) * 0.05)(D, D)),
        }
    _A_in = _A_setup()

    def _B_setup():
        B, S, D, H = 1, 2048, 512, 32
        return {
            "x": _w((lambda *s: torch.randn(*s, dtype=torch.bfloat16) * 0.2)(B, S, D)),
            "wqkv": _w((lambda *s: torch.randn(*s, dtype=torch.bfloat16) * 0.2)(D, 3 * D)),
            "wo": _w((lambda *s: torch.randn(*s, dtype=torch.bfloat16) * 0.05)(D, D)),
        }
    _B_in = _B_setup()

    return {
        "A_x": _A_in["x"],
        "A_wqkv": _A_in["wqkv"],
        "A_wo": _A_in["wo"],
        "B_x": _B_in["x"],
        "B_wqkv": _B_in["wqkv"],
        "B_wo": _B_in["wo"],
    }

def reference(A_x, A_wqkv, A_wo, B_x, B_wqkv, B_wo):
    def _A_ref(x, wqkv, wo):
        B, S, D = x.shape
        H = 32; Dh = D // H
        qkv = (lambda x, *d: x.permute(*d))((x @ wqkv).reshape(B, S, 3, H, Dh), 2, 0, 3, 1, 4)
        q, k, v = qkv[0], qkv[1], qkv[2]
        scale = Dh ** -0.5
        scores = torch.einsum("bhqd,bhkd->bhqk", q, k) * scale
        p = _softmax(scores, axis=-1)
        o = torch.einsum("bhqk,bhkd->bhqd", p, v)
        return (lambda x, *d: x.permute(*d))(o, 0, 2, 1, 3).reshape(B, S, D) @ wo

    def _B_ref(x, wqkv, wo):
        B, S, D = x.shape
        H = 32
        Dh = D // H
        qkv = (lambda x, *d: x.permute(*d))((x @ wqkv).reshape(B, S, 3, H, Dh), 2, 0, 3, 1, 4)
        q, k, v = qkv[0], qkv[1], qkv[2]
        scores = torch.einsum("bhqd,bhkd->bhqk", q, k) * (Dh ** -0.5)
        p = _softmax(scores, axis=-1)
        o = torch.einsum("bhqk,bhkd->bhqd", p, v)
        return (lambda x, *d: x.permute(*d))(o, 0, 2, 1, 3).reshape(B, S, D) @ wo

    a = _A_ref(A_x, A_wqkv, A_wo)
    b = _B_ref(B_x, B_wqkv, B_wo)
    return torch.concatenate([a, b], axis=-1)
```

```python
class Asm:
    def __init__(self):
        self.lines = []
    def __call__(self, s=""):
        for ln in s.split("\n"):
            ln = ln.rstrip()
            if ln.strip() == "":
                continue
            if ln.strip().endswith(":") and not ln.strip().startswith(";"):
                self.lines.append(ln.strip())
            else:
                self.lines.append("    " + ln.strip())
    def text(self):
        return "\n".join(self.lines) + "\n"

def vr(a, n=1):
    return f"v{a}" if n == 1 else f"v[{a}:{a+n-1}]"
def sr(a, n=1):
    return f"s{a}" if n == 1 else f"s[{a}:{a+n-1}]"

def srd(A, d, base, nbytes):
    A(f"s_mov_b32 s{d}, s{base}")
    A(f"s_and_b32 s{d+1}, s{base+1}, 0xffff")
    A(f"s_mov_b32 s{d+2}, {nbytes}")
    A(f"s_mov_b32 s{d+3}, 0x20000")

def descriptor(name, vgpr, sgpr=102, accum=None):
    if accum is None:
        accum = min(256, (vgpr + 3) // 4 * 4)
    return f""".section .rodata,"a"
.p2align 6
.amdhsa_kernel {name}
  .amdhsa_next_free_vgpr {vgpr}
  .amdhsa_next_free_sgpr {sgpr}
  .amdhsa_accum_offset {accum}
  .amdhsa_group_segment_fixed_size 0
  .amdhsa_kernarg_size 72
  .amdhsa_user_sgpr_count 2
  .amdhsa_user_sgpr_kernarg_segment_ptr 1
  .amdhsa_system_sgpr_workgroup_id_x 1
.end_amdhsa_kernel
"""

def kernel_head(name):
    return f""".text
.globl {name}
.p2align 8
.type {name},@function
{name}:
"""
HEADER = """; Kernarg layout for this problem (72 bytes, ptrs only, base s[0:1]):
"""
```

```python
import sys
from asmlib import *

WS_Q, WS_KV, WS_O, WS_PROF = 0, 4 << 20, 12 << 20, 16 << 20
WS_BYTES = 32 << 20
QSCALE = 0x3eb8aa3b
PROF = len(sys.argv) > 2 and "prof" in sys.argv[2]

def stamp(A, slot, kid, sws=24):
    if not PROF:
        return
    A(f"s_memtime s[90:91]")
    A(f"s_memrealtime s[92:93]")
    A(f"s_waitcnt lgkmcnt(0)")
    A(f"v_mov_b32 v250, s90")
    A(f"v_mov_b32 v251, s92")
    A(f"v_mov_b32 v252, s94")
    A(f"s_mov_b64 s[96:97], exec")
    A(f"s_mov_b64 exec, 1")
    A(f"buffer_store_dwordx2 v[250:251], v252, s[{sws}:{sws+3}], 0 offen offset:{slot*8}")
    A(f"s_mov_b64 exec, s[96:97]")
def stamp_init(A, kid, swave):
    if not PROF:
        return
    A(f"s_lshl_b32 s94, s2, 4")
    A(f"s_add_u32 s94, s94, s{swave}")
    A(f"s_lshl_b32 s94, s94, 6")
    A(f"s_add_u32 s94, s94, {WS_PROF + kid * (1 << 20)}")

def gen_qkv(S=4):
    A = Asm()
    STG = 40960
    sX, sW, sWS = 16, 20, 24
    sw, sb, shq, stb, stt, sp = 28, 29, 30, 31, 32, 33
    vlane, vx0, vx1, vw = 1, 2, 3, 4
    vxa = [8, 9, 10, 11]; vxh = [12, 13, 14, 15]; vwa, vwh = 16, 17
    F = [20, 36]
    aQ, aK, aV = 64, 80, 96
    A("s_cmp_ge_u32 s2, 256")
    A("s_cbranch_scc1 L_qkv_end")
    A("s_load_dwordx4 s[4:7], s[0:1], 0")
    A("s_load_dwordx4 s[8:11], s[0:1], 24")
    A("s_load_dwordx2 s[12:13], s[0:1], 64")
    A(f"v_lshrrev_b32 v5, 6, v0")
    A(f"v_and_b32 v{vlane}, 63, v0")
    A(f"v_readfirstlane_b32 s{sw}, v5")
    A(f"s_and_b32 s34, s2, 7")
    A(f"s_lshr_b32 s35, s2, 3")
    A(f"s_lshr_b32 s{sb}, s34, 2")
    A(f"s_and_b32 s34, s34, 3")
    A(f"s_lshl_b32 s34, s34, 1")
    A(f"s_lshr_b32 s36, s35, 4")
    A(f"s_add_u32 s{shq}, s34, s36")
    A(f"s_and_b32 s{stb}, s35, 15")
    A(f"s_and_b32 s{stt}, s{sw}, 3")
    A(f"s_lshr_b32 s{sp}, s{sw}, 2")
    A(f"v_lshrrev_b32 v5, 3, v{vlane}")
    A(f"v_and_b32 v6, 7, v{vlane}")
    A(f"v_lshrrev_b32 v7, 1, v5")
    A(f"v_xor_b32 v18, v6, v7")
    A(f"v_xor_b32 v19, 4, v18")
    A(f"s_lshl_b32 s34, s{stb}, 7")
    A(f"s_lshl_b32 s35, s{sw}, 4")
    A(f"s_add_u32 s34, s34, s35")
    A(f"v_add_u32 v{vx0}, s34, v5")
    A(f"v_lshlrev_b32 v{vx0}, 10, v{vx0}")
    A(f"v_add_u32 v{vx1}, 8192, v{vx0}")
    A(f"v_lshl_add_u32 v{vx0}, v18, 4, v{vx0}")
    A(f"v_lshl_add_u32 v{vx1}, v19, 4, v{vx1}")
    A(f"v_and_b32 v7, 1, v7")
    A(f"v_lshlrev_b32 v7, 2, v7")
    A(f"v_xor_b32 v7, v6, v7")
    A(f"s_lshl_b32 s34, s{sw}, 3")
    A(f"v_add_u32 v{vw}, s34, v5")
    A(f"v_mul_u32_u24 v{vw}, 3072, v{vw}")
    A(f"v_lshl_add_u32 v{vw}, v7, 4, v{vw}")
    A(f"s_lshl_b32 s34, s{shq}, 7")
    A(f"v_add_u32 v{vw}, s34, v{vw}")
    A("s_waitcnt lgkmcnt(0)")
    A(f"s_cmp_eq_u32 s{sb}, 0")
    A("s_cselect_b64 s[4:5], s[4:5], s[8:9]")
    A("s_cselect_b64 s[6:7], s[6:7], s[10:11]")
    srd(A, sX, 4, 2048 * 1024)
    srd(A, sW, 6, 512 * 3072)
    srd(A, sWS, 12, WS_BYTES)
    stamp_init(A, 0, sw); stamp(A, 0, 0)
    A(f"s_lshl_b32 s40, s{sw}, 11")
    A(f"s_lshl_b32 s41, s{sw}, 10")
    def dma(c):
        st = (c % S) * STG
        A(f"s_add_u32 m0, s40, {st}")
        A(f"s_movk_i32 s42, {c * 128}")
        A(f"buffer_load_dwordx4 v{vx0}, s[{sX}:{sX+3}], s42 offen lds")
        A(f"s_add_u32 m0, s40, {st + 1024}")
        A(f"s_mov_b32 s43, {c * 64 * 3072}")
        A(f"buffer_load_dwordx4 v{vx1}, s[{sX}:{sX+3}], s42 offen lds")
        for g in range(3):
            A(f"s_add_u32 m0, s41, {st + 16384 + g * 8192}")
            A(f"s_mov_b32 s43, {c * 64 * 3072 + g * 1024}")
            A(f"buffer_load_dwordx4 v{vw}, s[{sW}:{sW+3}], s43 offen lds")
    for c in range(min(S, 8)):
        dma(c)
    A(f"v_and_b32 v5, 31, v{vlane}")
    A(f"v_lshrrev_b32 v6, 5, v{vlane}")
    A(f"v_bfe_u32 v7, v{vlane}, 1, 3")
    A(f"v_xor_b32 v7, v7, v6")
    A(f"s_lshl_b32 s34, s{stt}, 12")
    A(f"v_lshl_add_u32 v5, v5, 7, s34")
    for s in range(4):
        A(f"v_xor_b32 v18, {2*s}, v7")
        A(f"v_lshl_add_u32 v{vxa[s]}, v18, 4, v5")
        A(f"v_add_u32 v{vxh[s]}, {2*STG}, v{vxa[s]}")
    A(f"v_bfe_u32 v5, v{vlane}, 2, 2")
    A(f"v_lshl_add_u32 v5, v6, 3, v5")
    A(f"v_lshlrev_b32 v5, 7, v5")
    A(f"v_bfe_u32 v7, v{vlane}, 3, 1")
    A(f"v_xor_b32 v7, s{sp}, v7")
    A(f"v_lshl_add_u32 v5, v7, 6, v5")
    A(f"v_bfe_u32 v7, v{vlane}, 4, 1")
    A(f"v_lshl_add_u32 v5, v7, 5, v5")
    A(f"v_and_b32 v7, 3, v{vlane}")
    A(f"v_lshl_add_u32 v5, v7, 3, v5")
    A(f"v_add_u32 v{vwa}, 16384, v5")
    A(f"v_add_u32 v{vwh}, {16384 + 2*STG}, v5")
    def reads(c, s):
        st = c % S
        f = F[(c * 4 + s) % 2]
        xa = (vxa if st < 2 else vxh)[s]
        wa = vwa if st < 2 else vwh
        o = (st & 1) * STG
        A(f"ds_read_b128 {vr(f,4)}, v{xa} offset:{o}")
        for g in range(3):
            for j in range(2):
                A(f"ds_read_b64_tr_b16 {vr(f+4+4*g+2*j,2)}, v{wa} offset:{o + g*8192 + (16*s+4*j)*128}")
    def mfmas(c, s):
        f = F[(c * 4 + s) % 2]
        first = (c == 0 and s == 0)
        cq, ck, cv = ("0", "0", "0") if first else (vr(aQ,16), vr(aK,16), vr(aV,16))
        A(f"v_mfma_f32_32x32x16_bf16 {vr(aK,16)}, {vr(f+8,4)}, {vr(f,4)}, {ck}")
        A(f"v_mfma_f32_32x32x16_bf16 {vr(aV,16)}, {vr(f,4)}, {vr(f+12,4)}, {cv}")
        A(f"v_mfma_f32_32x32x16_bf16 {vr(aQ,16)}, {vr(f+4,4)}, {vr(f,4)}, {cq}")
    issued = min(S, 8)
    A(f"s_waitcnt vmcnt({5*(issued-1)})")
    A("s_barrier")
    stamp(A, 1, 0)
    reads(0, 0)
    for c in range(8):
        for s in range(4):
            nc, ns = (c, s + 1) if s < 3 else (c + 1, 0)
            if s == 3 and c < 7:
                A(f"s_waitcnt vmcnt({5*(issued-(c+2))}) lgkmcnt(0)")
                A("s_barrier")
                if issued < 8:
                    dma(issued); issued += 1
                reads(nc, ns)
            elif nc < 8:
                reads(nc, ns)
                A("s_waitcnt lgkmcnt(7)")
            else:
                A("s_waitcnt lgkmcnt(0)")
            mfmas(c, s)
    stamp(A, 2, 0)
    A(f"s_lshl_b32 s34, s{sb}, 5")
    A(f"s_lshl_b32 s35, s{shq}, 2")
    A(f"s_add_u32 s34, s34, s35")
    A(f"s_lshl_b32 s35, s{sp}, 1")
    A(f"s_add_u32 s34, s34, s35")
    A(f"s_lshl_b32 s34, s34, 6")
    A(f"s_lshl_b32 s35, s{stb}, 2")
    A(f"s_add_u32 s34, s34, s35")
    A(f"s_add_u32 s34, s34, s{stt}")
    A(f"s_lshl_b32 s36, s34, 10")
    A(f"s_lshl_b32 s37, s34, 11")
    A(f"s_add_u32 s37, s37, {WS_KV}")
    A(f"s_add_u32 s38, s36, {64*1024}")
    A(f"s_add_u32 s39, s37, {64*2048}")
    A(f"v_lshlrev_b32 v5, 4, v{vlane}")
    A(f"v_bfe_u32 v6, v{vlane}, 4, 1")
    A(f"v_lshlrev_b32 v6, 17, v6")
    A(f"v_and_b32 v7, 15, v{vlane}")
    A(f"v_lshl_add_u32 v6, v7, 4, v6")
    A(f"v_lshrrev_b32 v7, 5, v{vlane}")
    A(f"v_lshl_add_u32 v6, v7, 9, v6")
    A(f"s_mov_b32 s44, {QSCALE}")
    A("s_nop 7")
    T = 20
    for i in range(8):
        A(f"v_cvt_pk_bf16_f32 v{T+i}, v{aK+2*i}, v{aK+2*i+1}")
    for i in range(8):
        A(f"v_cvt_pk_bf16_f32 v{T+8+i}, v{aV+2*i}, v{aV+2*i+1}")
    A(f"buffer_store_dwordx4 {vr(T,4)}, v5, s[{sWS}:{sWS+3}], s37 offen")
    A(f"buffer_store_dwordx4 {vr(T+4,4)}, v5, s[{sWS}:{sWS+3}], s39 offen")
    for m in range(2):
        A(f"v_permlane32_swap_b32 v{T+8+4*m}, v{T+8+4*m+2}")
        A(f"v_permlane32_swap_b32 v{T+8+4*m+1}, v{T+8+4*m+3}")
    for i in range(16):
        A(f"v_mul_f32 v{aQ+i}, s44, v{aQ+i}")
    A(f"buffer_store_dwordx4 {vr(T+8,4)}, v6, s[{sWS}:{sWS+3}], s37 offen offset:1024")
    A(f"buffer_store_dwordx4 {vr(T+12,4)}, v6, s[{sWS}:{sWS+3}], s37 offen offset:1280")
    for i in range(8):
        A(f"v_cvt_pk_bf16_f32 v{T+16+i}, v{aQ+2*i}, v{aQ+2*i+1}")
    A(f"buffer_store_dwordx4 {vr(T+16,4)}, v5, s[{sWS}:{sWS+3}], s36 offen")
    A(f"buffer_store_dwordx4 {vr(T+20,4)}, v5, s[{sWS}:{sWS+3}], s38 offen")
    if PROF:
        A("s_waitcnt vmcnt(0)")
    stamp(A, 3, 0)
    A("L_qkv_end:")
    A("s_endpgm")
    return A.text(), (256 if PROF else 112), S * STG

class AttnRegs:
    vlane, vaddr, vidx = 1, 2, 3
    vK, vV0, vV1 = 8, 12, 16
    vQ = [20, 24]
    vS = [32, 48]
    vO = [64, 80]
    vC = [96, 112]
    sMask = 40

def attn_block(A, R, off, use_c, first=False):
    def qk(t):
        c = vr(R.vC[t], 16) if use_c else "0"
        A(f"v_mfma_f32_32x32x16_bf16 {vr(R.vS[t],16)}, {vr(R.vK,4)}, {vr(R.vQ[t],4)}, {c}")
    def pv(t, m):
        A(f"v_smfmac_f32_32x32x32_bf16 {vr(R.vO[t],16)}, {vr(R.vV1 if m else R.vV0,4)}, {vr(R.vS[t]+8*m,8)}, v{R.vidx}")
    def ex(t, a, b):
        for i in range(a, b):
            A(f"v_exp_f32 v{R.vS[t]+i}, v{R.vS[t]+i}")
    def ldv(reg, o):
        A(f"s_mov_b64 exec, s[{R.sMask}:{R.sMask+1}]")
        A(f"ds_read_b128 {vr(reg,4)}, v{R.vaddr} offset:{o}")
        A(f"s_mov_b64 exec, -1")
    ex(0, 0, 3)
    if not first:
        pv(1, 1)
    ldv(R.vV1, off + 1024 + 256)
    ex(0, 3, 6)
    qk(1)
    A(f"ds_read_b128 {vr(R.vK,4)}, v{R.vaddr} offset:{off + 2048}")
    ex(0, 6, 11)
    A("s_waitcnt lgkmcnt(2)")
    pv(0, 0)
    ex(0, 11, 16)
    ex(1, 0, 3)
    A("s_waitcnt lgkmcnt(1)")
    pv(0, 1)
    ex(1, 3, 6)
    A("s_waitcnt lgkmcnt(0)")
    qk(0)
    ex(1, 6, 11)
    pv(1, 0)
    ldv(R.vV0, off + 2048 + 1024)
    ex(1, 11, 16)

def attn_start(A, R, use_c):
    A(f"ds_read_b128 {vr(R.vK,4)}, v{R.vaddr}")
    A(f"s_mov_b64 exec, s[{R.sMask}:{R.sMask+1}]")
    A(f"ds_read_b128 {vr(R.vV0,4)}, v{R.vaddr} offset:1024")
    A(f"s_mov_b64 exec, -1")
    for t in range(2):
        for i in range(16):
            A(f"v_mov_b32 v{R.vO[t]+i}, 0")
    A("s_waitcnt lgkmcnt(1)")
    c = vr(R.vC[0], 16) if use_c else "0"
    A(f"v_mfma_f32_32x32x16_bf16 {vr(R.vS[0],16)}, {vr(R.vK,4)}, {vr(R.vQ[0],4)}, {c}")
    A("s_nop 15")

def gen_attn():
    A = Asm()
    R = AttnRegs
    sWS = 24
    sw, sH, sqb = 28, 29, 30
    U = 4
    A("s_cmp_ge_u32 s2, 256")
    A("s_cbranch_scc1 L_attn_end")
    A("s_load_dwordx2 s[12:13], s[0:1], 64")
    A(f"v_lshrrev_b32 v5, 6, v0")
    A(f"v_and_b32 v{R.vlane}, 63, v0")
    A(f"v_readfirstlane_b32 s{sw}, v5")
    A(f"s_and_b32 s34, s2, 7")
    A(f"s_lshr_b32 s35, s2, 3")
    A(f"s_lshl_b32 s34, s34, 3")
    A(f"s_lshr_b32 s36, s35, 2")
    A(f"s_add_u32 s{sH}, s34, s36")
    A(f"s_and_b32 s{sqb}, s35, 3")
    A(f"v_lshlrev_b32 v{R.vaddr}, 4, v{R.vlane}")
    A(f"s_lshl_b32 s34, s{sqb}, 4")
    A(f"s_lshl_b32 s35, s{sw}, 1")
    A(f"s_add_u32 s31, s34, s35")
    A(f"s_lshl_b32 s34, s{sH}, 6")
    A(f"s_add_u32 s34, s34, s31")
    A(f"s_lshl_b32 s34, s34, 10")
    A(f"s_lshl_b32 s35, s{sH}, 17")
    A(f"s_lshl_b32 s36, s{sw}, 10")
    A(f"s_add_u32 s35, s35, s36")
    A(f"s_add_u32 s35, s35, {WS_KV}")
    A("s_waitcnt lgkmcnt(0)")
    srd(A, sWS, 12, WS_BYTES)
    stamp_init(A, 1, sw); stamp(A, 0, 1)
    A(f"s_mov_b32 m0, s36")
    A(f"buffer_load_dwordx4 {vr(R.vQ[0],4)}, v{R.vaddr}, s[{sWS}:{sWS+3}], s34 offen")
    A(f"buffer_load_dwordx4 {vr(R.vQ[1],4)}, v{R.vaddr}, s[{sWS}:{sWS+3}], s34 offen offset:1024")
    for r in range(16):
        A(f"buffer_load_dwordx4 v{R.vaddr}, s[{sWS}:{sWS+3}], s35 offen lds")
        if r < 15:
            A(f"s_add_u32 m0, m0, 8192")
            A(f"s_add_u32 s35, s35, 8192")
    A(f"s_mov_b32 s{R.sMask}, 0x0000ffff")
    A(f"s_mov_b32 s{R.sMask+1}, 0x0000ffff")
    A(f"v_mov_b32 v{R.vidx}, 0xdddddddd")
    A(f"v_and_b32 v5, 27, v{R.vlane}")
    A(f"v_cmp_eq_u32 vcc, 16, v5")
    A(f"v_mov_b32 v6, 0x3f803f80")
    A("s_nop 1")
    for i in range(8):
        A(f"v_cndmask_b32 v{R.vV0+i}, 0, v6, vcc")
    A("s_mov_b32 s42, 0")
    waits = {0: 14, 1: 8, 2: 0}
    A(f"s_waitcnt vmcnt({waits[0]})")
    A("s_barrier")
    stamp(A, 1, 1)
    attn_start(A, R, False)
    for it in range(2):
        for u in range(U):
            attn_block(A, R, u * 2048, False, first=(it == 0 and u == 0))
        A(f"v_add_u32 v{R.vaddr}, {U*2048}, v{R.vaddr}")
        A(f"s_waitcnt vmcnt({waits[it+1]})")
        A("s_barrier")
    A(f"s_movk_i32 s43, {64 // U - 2}")
    A(".p2align 4")
    A("L_attn_loop:")
    for u in range(U):
        attn_block(A, R, u * 2048, False)
    A(f"v_add_u32 v{R.vaddr}, {U*2048}, v{R.vaddr}")
    A("s_sub_u32 s43, s43, 1")
    A("s_cmp_lg_u32 s43, 0")
    A("s_cbranch_scc1 L_attn_loop")
    A("L_attn_fin:")
    A(f"v_smfmac_f32_32x32x32_bf16 {vr(R.vO[1],16)}, {vr(R.vV1,4)}, {vr(R.vS[1]+8,8)}, v{R.vidx}")
    stamp(A, 2, 1)
    A(f"v_lshlrev_b32 v{R.vaddr}, 4, v{R.vlane}")
    A("s_mov_b32 s44, 0x2f800000")
    A("s_mov_b32 s45, 0x5f800000")
    A("s_mov_b32 s46, 0x7f800000")
    A("s_waitcnt lgkmcnt(0)")
    A("s_nop 15")
    A("s_mov_b64 s[48:49], 0")
    for t in range(2):
        O = R.vO[t]
        A(f"v_add_f32 v5, abs(v{O}), abs(v{O+1})")
        for i in range(2, 8):
            A(f"v_add_f32 v5, v5, abs(v{O+i})")
        A(f"v_cmp_nge_f32 vcc, v{O+8}, s44".replace(f"v{O+8}, s44", f"s45, v{O+8}"))
        A("s_or_b64 s[48:49], s[48:49], vcc")
        A(f"v_cmp_nle_f32 vcc, s44, v{O+8}")
        A("s_or_b64 s[48:49], s[48:49], vcc")
        A(f"v_cmp_ngt_f32 vcc, s46, v5")
        A("s_or_b64 s[48:49], s[48:49], vcc")
    A("s_cmp_eq_u64 s[48:49], 0")
    A("s_cbranch_scc1 L_attn_out")
    A("s_cmp_lg_u32 s42, 0")
    A("s_cbranch_scc1 L_attn_out")
    A("s_mov_b32 s42, 1")
    A("v_mov_b32 v6, 0xff800000")
    A("v_mov_b32 v7, 0xff800000")
    A("s_movk_i32 s43, 64")
    A("L_attn_max:")
    A(f"ds_read_b128 {vr(R.vK,4)}, v{R.vaddr}")
    A(f"v_add_u32 v{R.vaddr}, 2048, v{R.vaddr}")
    A("s_waitcnt lgkmcnt(0)")
    for t in range(2):
        A(f"v_mfma_f32_32x32x16_bf16 {vr(R.vS[t],16)}, {vr(R.vK,4)}, {vr(R.vQ[t],4)}, 0")
    A("s_nop 15")
    for t in range(2):
        for i in range(8):
            A(f"v_max3_f32 v{6+t}, v{6+t}, v{R.vS[t]+2*i}, v{R.vS[t]+2*i+1}")
    A("s_sub_u32 s43, s43, 1")
    A("s_cmp_lg_u32 s43, 0")
    A("s_cbranch_scc1 L_attn_max")
    for t in range(2):
        A(f"v_mov_b32 v4, v{6+t}")
        A("s_nop 1")
        A(f"v_permlane32_swap_b32 v4, v{6+t}")
        A("s_nop 1")
        A(f"v_max_f32 v4, v4, v{6+t}")
        for i in range(16):
            A(f"v_sub_f32 v{R.vC[t]+i}, 0, v4")
    A(f"v_lshlrev_b32 v{R.vaddr}, 4, v{R.vlane}")
    A("s_nop 1")
    attn_start(A, R, True)
    attn_block(A, R, 0, True, first=True)
    A(f"v_add_u32 v{R.vaddr}, 2048, v{R.vaddr}")
    A("s_movk_i32 s43, 63")
    A("L_attn_loop2:")
    attn_block(A, R, 0, True)
    A(f"v_add_u32 v{R.vaddr}, 2048, v{R.vaddr}")
    A("s_sub_u32 s43, s43, 1")
    A("s_cmp_lg_u32 s43, 0")
    A("s_cbranch_scc1 L_attn_loop2")
    A("s_branch L_attn_fin")
    A("L_attn_out:")
    A(f"s_lshr_b32 s34, s{sH}, 5")
    A(f"s_lshl_b32 s34, s34, 6")
    A(f"s_add_u32 s34, s34, s31")
    A(f"s_lshl_b32 s34, s34, 5")
    A(f"s_and_b32 s35, s{sH}, 31")
    A(f"s_add_u32 s34, s34, s35")
    A(f"s_lshl_b32 s34, s34, 10")
    A(f"s_add_u32 s34, s34, {WS_O}")
    A(f"s_add_u32 s35, s34, {32*1024}")
    for t in range(2):
        O = R.vO[t]
        A(f"v_rcp_f32 v5, v{O+8}")
        A("s_nop 0")
        for i in range(8):
            A(f"v_mul_f32 v{O+i}, v5, v{O+i}")
        for i in range(4):
            A(f"v_cvt_pk_bf16_f32 v{R.vS[t]+i}, v{O+2*i}, v{O+2*i+1}")
        A(f"buffer_store_dwordx4 {vr(R.vS[t],4)}, v{R.vaddr}, s[{sWS}:{sWS+3}], s{34+t} offen")
    if PROF:
        A("s_waitcnt vmcnt(0)")
    stamp(A, 3, 1)
    A("L_attn_end:")
    A("s_endpgm")
    return A.text(), (256 if PROF else 128), 131072 + 4096

def gen_proj(S=6):
    A = Asm()
    STG = 24576
    sWo, sOut, sWS = 16, 20, 24
    sw, sb, stb, scb = 28, 29, 30, 31
    vlane, vo, vw = 1, 2, 3
    vob = [8, 9, 10]; vwb = [11, 12, 13]
    F = [20, 28]
    acc = 48
    A("s_cmp_ge_u32 s2, 256")
    A("s_cbranch_scc1 L_proj_end")
    A("s_load_dwordx2 s[4:5], s[0:1], 16")
    A("s_load_dwordx4 s[8:11], s[0:1], 40")
    A("s_load_dwordx2 s[12:13], s[0:1], 64")
    A(f"v_lshrrev_b32 v5, 6, v0")
    A(f"v_and_b32 v{vlane}, 63, v0")
    A(f"v_readfirstlane_b32 s{sw}, v5")
    A(f"s_and_b32 s34, s2, 7")
    A(f"s_lshr_b32 s35, s2, 3")
    A(f"s_lshr_b32 s{sb}, s34, 2")
    A(f"s_and_b32 s34, s34, 3")
    A(f"s_lshl_b32 s34, s34, 3")
    A(f"s_lshr_b32 s36, s35, 2")
    A(f"s_add_u32 s{stb}, s34, s36")
    A(f"s_and_b32 s{scb}, s35, 3")
    A(f"v_lshlrev_b32 v{vo}, 4, v{vlane}")
    A(f"s_lshl_b32 s34, s{sb}, 6")
    A(f"s_lshl_b32 s35, s{stb}, 1")
    A(f"s_add_u32 s34, s34, s35")
    A(f"s_lshr_b32 s35, s{sw}, 2")
    A(f"s_add_u32 s34, s34, s35")
    A(f"s_lshl_b32 s34, s34, 5")
    A(f"s_and_b32 s35, s{sw}, 3")
    A(f"s_add_u32 s34, s34, s35")
    A(f"s_lshl_b32 s34, s34, 10")
    A(f"s_add_u32 s45, s34, {WS_O}")
    A(f"v_lshrrev_b32 v5, 4, v{vlane}")
    A(f"v_and_b32 v6, 15, v{vlane}")
    A(f"v_lshlrev_b32 v7, 2, v5")
    A(f"v_xor_b32 v6, v6, v7")
    A(f"s_lshl_b32 s34, s{sw}, 3")
    A(f"v_add_u32 v5, s34, v5")
    A(f"v_lshlrev_b32 v5, 10, v5")
    A(f"v_lshl_add_u32 v5, v6, 4, v5")
    A(f"s_lshl_b32 s34, s{scb}, 8")
    A(f"v_add_u32 v{vw}, s34, v5")
    A("s_waitcnt lgkmcnt(0)")
    A(f"s_cmp_eq_u32 s{sb}, 0")
    A("s_cselect_b64 s[4:5], s[4:5], s[8:9]")
    srd(A, sWo, 4, 512 * 1024)
    srd(A, sOut, 10, 2048 * 2048)
    srd(A, sWS, 12, WS_BYTES)
    stamp_init(A, 2, sw); stamp(A, 0, 2)
    A(f"s_lshl_b32 s40, s{sw}, 10")
    A(f"s_lshl_b32 s41, s{sw}, 11")
    def dma(c):
        st = (c % S) * STG
        A(f"s_add_u32 m0, s40, {st}")
        A(f"s_add_u32 s42, s45, {c * 4096}")
        A(f"buffer_load_dwordx4 v{vo}, s[{sWS}:{sWS+3}], s42 offen lds")
        for i in range(2):
            A(f"s_add_u32 m0, s41, {st + 8192 + i * 1024}")
            A(f"s_mov_b32 s43, {c * 65536 + i * 4096}")
            A(f"buffer_load_dwordx4 v{vw}, s[{sWo}:{sWo+3}], s43 offen lds")
    for c in range(min(S, 8)):
        dma(c)
    A(f"s_lshr_b32 s34, s{sw}, 2")
    A(f"s_lshl_b32 s34, s34, 12")
    A(f"v_add_u32 v{vob[0]}, s34, v{vo}")
    A(f"v_lshrrev_b32 v5, 5, v{vlane}")
    A(f"v_bfe_u32 v6, v{vlane}, 2, 2")
    A(f"v_lshl_add_u32 v5, v5, 2, v6")
    A(f"v_lshlrev_b32 v5, 8, v5")
    A(f"s_and_b32 s35, s{sw}, 3")
    A(f"v_xor_b32 v6, s35, v6")
    A(f"v_lshl_add_u32 v5, v6, 6, v5")
    A(f"v_bfe_u32 v6, v{vlane}, 4, 1")
    A(f"v_lshl_add_u32 v5, v6, 5, v5")
    A(f"v_and_b32 v6, 3, v{vlane}")
    A(f"v_lshl_add_u32 v5, v6, 3, v5")
    A(f"v_add_u32 v{vwb[0]}, 8192, v5")
    for k in (1, 2):
        A(f"v_add_u32 v{vob[k]}, {2*k*STG}, v{vob[0]}")
        A(f"v_add_u32 v{vwb[k]}, {2*k*STG}, v{vwb[0]}")
    def reads(c, s):
        st = c % S
        f = F[(c * 4 + s) % 2]
        o = (st & 1) * STG
        A(f"ds_read_b128 {vr(f,4)}, v{vob[st//2]} offset:{o + s*1024}")
        for j in range(2):
            A(f"ds_read_b64_tr_b16 {vr(f+4+2*j,2)}, v{vwb[st//2]} offset:{o + (16*s+8*j)*256}")
    issued = min(S, 8)
    A(f"s_waitcnt vmcnt({3*(issued-1)})")
    A("s_barrier")
    stamp(A, 1, 2)
    reads(0, 0)
    for c in range(8):
        for s in range(4):
            nc, ns = (c, s + 1) if s < 3 else (c + 1, 0)
            if s == 3 and c < 7:
                A(f"s_waitcnt vmcnt({3*(issued-(c+2))}) lgkmcnt(0)")
                A("s_barrier")
                if issued < 8:
                    dma(issued); issued += 1
                reads(nc, ns)
            elif nc < 8:
                reads(nc, ns)
                A("s_waitcnt lgkmcnt(3)")
            else:
                A("s_waitcnt lgkmcnt(0)")
            f = F[(c * 4 + s) % 2]
            cc = "0" if (c == 0 and s == 0) else vr(acc, 16)
            A(f"v_mfma_f32_32x32x16_bf16 {vr(acc,16)}, {vr(f+4,4)}, {vr(f,4)}, {cc}")
    stamp(A, 2, 2)
    A(f"s_lshl_b32 s34, s{stb}, 1")
    A(f"s_lshr_b32 s35, s{sw}, 2")
    A(f"s_add_u32 s34, s34, s35")
    A(f"s_lshl_b32 s34, s34, 16")
    A(f"s_lshl_b32 s35, s{sb}, 10")
    A(f"s_add_u32 s34, s34, s35")
    A(f"s_lshl_b32 s35, s{scb}, 8")
    A(f"s_add_u32 s34, s34, s35")
    A(f"s_and_b32 s35, s{sw}, 3")
    A(f"s_lshl_b32 s35, s35, 6")
    A(f"s_add_u32 s34, s34, s35")
    A(f"v_and_b32 v5, 31, v{vlane}")
    A(f"v_lshlrev_b32 v5, 11, v5")
    A(f"v_lshrrev_b32 v6, 5, v{vlane}")
    A(f"v_lshl_add_u32 v5, v6, 4, v5")
    A("s_nop 7")
    for i in range(8):
        A(f"v_cvt_pk_bf16_f32 v{20+i}, v{acc+2*i}, v{acc+2*i+1}")
    A("s_nop 1")
    for m in range(2):
        A(f"v_permlane32_swap_b32 v{20+4*m}, v{20+4*m+2}")
        A(f"v_permlane32_swap_b32 v{20+4*m+1}, v{20+4*m+3}")
    A(f"buffer_store_dwordx4 {vr(20,4)}, v5, s[{sOut}:{sOut+3}], s34 offen")
    A(f"buffer_store_dwordx4 {vr(24,4)}, v5, s[{sOut}:{sOut+3}], s34 offen offset:32")
    if PROF:
        A("s_waitcnt vmcnt(0)")
    stamp(A, 3, 2)
    A("L_proj_end:")
    A("s_endpgm")
    return A.text(), (256 if PROF else 64), S * STG

def main(path):
    ks = [("qkv_kernel", *gen_qkv()), ("attn_kernel", *gen_attn()), ("proj_kernel", *gen_proj())]
    out = HEADER
    for name, _, _, lds in ks:
        out += f"; @launch kernel={name} grid=(256,1,1) block=(512,1,1) lds={lds}\n"
    out += '.amdgcn_target "amdgcn-amd-amdhsa--gfx950"\n'
    for name, body, _, _ in ks:
        out += kernel_head(name) + body
    for name, _, vgpr, _ in ks:
        out += descriptor(name, vgpr)
    open(path, "w").write(out)

if __name__ == "__main__":
    main(sys.argv[1])
```
